```python
import torch

def _softmax(x, axis=-1):
    return torch.softmax(x, dim=axis)
def _gelu(x):
    return torch.nn.functional.gelu(x, approximate="tanh")
def _silu(x):
    return torch.nn.functional.silu(x)
def _sigmoid(x):
    return torch.sigmoid(x)
def _layernorm(x, axis=-1, eps=1e-5):
    m = x.mean(dim=axis, keepdim=True)
    v = x.var(dim=axis, keepdim=True, unbiased=False)
    return (x - m) / torch.sqrt(v + eps)
def _scatter_add(tgt, idx, src, axis=0):
    return tgt.clone().index_add_(axis, idx, src)
def _segment_sum(src, seg, n):
    out = torch.zeros((n,) + src.shape[1:], dtype=src.dtype)
    return out.index_add_(0, seg, src)
def _pad(x, pw):
    flat = tuple(v for pair in reversed(pw) for v in pair)
    return torch.nn.functional.pad(x, flat)

kernel_name = 'standalone__gqa_softmax__near_ridge'

def setup_inputs():

    _w = (lambda a: (lambda t: t.to(torch.bfloat16) if t.is_floating_point() else t)(torch.as_tensor(a)))
    B, Hq, Hkv, Sq, Sk, D = 64, 32, 8, 256, 256, 128
    return {
        "q": _w((lambda *s: torch.randn(*s, dtype=torch.bfloat16) * 0.8)(B, Hq, Sq, D)),
        "k": _w((lambda *s: torch.randn(*s, dtype=torch.bfloat16) * 0.8)(B, Hkv, Sk, D)),
        "v": _w((lambda *s: torch.randn(*s, dtype=torch.bfloat16) * 0.05)(B, Hkv, Sk, D)),
    }

def reference(q, k, v):
    B, Hq, Sq, D = q.shape
    Hkv = k.shape[1]
    rep = Hq // Hkv
    k = (lambda x, n, axis: torch.repeat_interleave(x, n, dim=axis))(k, rep, axis=1)
    v = (lambda x, n, axis: torch.repeat_interleave(x, n, dim=axis))(v, rep, axis=1)
    scale = D ** -0.5
    scores = torch.einsum("bhqd,bhkd->bhqk", q, k) * scale
    p = _softmax(scores, axis=-1)
    return torch.einsum("bhqk,bhkd->bhqd", p, v)
```

```python
import struct, sys

KSTRIDE = 272
VSTRIDE = 320
VBASE = 256 * KSTRIDE
LDS_BYTES = VBASE + 256 * VSTRIDE

Q_BYTES = 64 * 32 * 256 * 128 * 2
KV_BYTES = 64 * 8 * 256 * 128 * 2

def f32bits(x):
    return struct.unpack('<I', struct.pack('<f', x))[0]

SCALE_LOG2E = (128 ** -0.5) * 1.4426950408889634

out = []
def e(s=''):
    out.append(s)

HEADER = open('standalone__gqa_softmax__near_ridge.s.ref').read().split('; @launch')[0]

e(HEADER.rstrip('\n'))
e(f'; @launch grid=(512,1,1) block=(512,1,1) lds={LDS_BYTES}')
e('.amdgcn_target "amdgcn-amd-amdhsa--gfx950"')
e('.text')
e('.globl standalone__gqa_softmax__near_ridge_kernel')
e('.p2align 8')
e('.type standalone__gqa_softmax__near_ridge_kernel,@function')
e('standalone__gqa_softmax__near_ridge_kernel:')

QF = 128
RING = 160
NRING = 8
vKRD = 192
vVRD0 = 193
vVRD1 = 194
vQOFF = 195
vOOFF = 196
vM = 197
vT = 198
vMC = 199
vL0 = 200; vL1 = 201; vL2 = 202; vL3 = 203
vR = 204
vTMP = 205
vKVOFF = 206
vKW = 207
vVW = 208
PK = 212

e('    s_cmp_ge_u32 s2, 512')
e('    s_cbranch_scc1 L_done')
e('    s_load_dwordx4 s[4:7], s[0:1], 0')
e('    s_load_dwordx4 s[8:11], s[0:1], 16')
e('    v_lshrrev_b32 v1, 6, v0')
e('    v_and_b32 v2, 63, v0')
e('    v_readfirstlane_b32 s28, v1')
e('    s_waitcnt lgkmcnt(0)')
for (srd, ptr, nb) in ((12, 4, Q_BYTES), (16, 6, KV_BYTES), (20, 8, KV_BYTES), (24, 10, Q_BYTES)):
    e(f'    s_mov_b32 s{srd}, s{ptr}')
    e(f'    s_and_b32 s{srd+1}, s{ptr+1}, 0xffff')
    e(f'    s_mov_b32 s{srd+2}, {nb}')
    e(f'    s_mov_b32 s{srd+3}, 0x00020000')
e(f'    s_mov_b32 s32, {f32bits(SCALE_LOG2E):#x}')
e('    v_and_b32 v3, 31, v2')
e('    v_lshrrev_b32 v4, 5, v2')
e('    v_and_b32 v5, 15, v2')
e('    v_lshrrev_b32 v6, 4, v2')
e(f'    v_mul_u32_u24 v{vKRD}, {KSTRIDE}, v3')
e(f'    v_lshl_add_u32 v{vKRD}, v4, 4, v{vKRD}')
e('    v_lshrrev_b32 v7, 2, v5')
e('    v_lshl_add_u32 v7, v4, 2, v7')
e(f'    v_mul_u32_u24 v{vVRD0}, {VSTRIDE}, v7')
e('    v_and_b32 v8, 1, v6')
e(f'    v_lshl_add_u32 v{vVRD0}, v8, 5, v{vVRD0}')
e('    v_and_b32 v8, 3, v2')
e(f'    v_lshl_add_u32 v{vVRD0}, v8, 3, v{vVRD0}')
e(f'    v_add_u32 v{vVRD0}, {VBASE}, v{vVRD0}')
e(f'    v_add_u32 v{vVRD1}, {128*VSTRIDE}, v{vVRD0}')
e(f'    v_lshlrev_b32 v{vQOFF}, 8, v3')
e(f'    v_lshl_add_u32 v{vQOFF}, v4, 4, v{vQOFF}')
e(f'    v_lshlrev_b32 v{vKVOFF}, 8, v6')
e(f'    v_lshl_add_u32 v{vKVOFF}, v5, 4, v{vKVOFF}')
e('    s_lshl_b32 s33, s28, 5')
e('    v_add_u32 v7, s33, v6')
e(f'    v_mul_u32_u24 v{vKW}, {KSTRIDE}, v7')
e(f'    v_lshl_add_u32 v{vKW}, v5, 4, v{vKW}')
e(f'    v_mul_u32_u24 v{vVW}, {VSTRIDE}, v7')
e(f'    v_lshl_add_u32 v{vVW}, v5, 4, v{vVW}')
e(f'    v_add_u32 v{vVW}, {VBASE}, v{vVW}')
e('    s_lshl_b32 s34, s2, 16')
e('    s_lshl_b32 s35, s28, 13')
e('    s_add_u32 s34, s34, s35')
e('    s_add_u32 s36, s34, 4096')
e('    s_lshl_b32 s30, s2, 18')
e('    s_add_u32 s30, s30, s35')
for j in range(8):
    so = 's34' if j < 4 else 's36'
    e(f'    buffer_load_dwordx4 v[{4*j}:{4*j+3}], v{vKVOFF}, s[16:19], {so} offen offset:{(j%4)*1024}')
for j in range(8):
    so = 's34' if j < 4 else 's36'
    e(f'    buffer_load_dwordx4 v[{32+4*j}:{32+4*j+3}], v{vKVOFF}, s[20:23], {so} offen offset:{(j%4)*1024}')
for s in range(8):
    e(f'    buffer_load_dwordx4 v[{QF+4*s}:{QF+4*s+3}], v{vQOFF}, s[12:15], s30 offen offset:{s*32}')
e('    s_waitcnt vmcnt(16)')
for j in range(8):
    e(f'    ds_write_b128 v{vKW}, v[{4*j}:{4*j+3}] offset:{j*4*KSTRIDE}')
e('    s_waitcnt vmcnt(8)')
for j in range(8):
    e(f'    ds_write_b128 v{vVW}, v[{32+4*j}:{32+4*j+3}] offset:{j*4*VSTRIDE}')
e('    s_waitcnt lgkmcnt(0)')
e('    s_barrier')
e('    s_mov_b32 s29, 0')
e('    s_waitcnt vmcnt(0)')
e('L_loop:')
DEPTH = 4
seq = [(t, s) for t in range(8) for s in range(8)]
def kread(n):
    t, s = seq[n]
    r = RING + 4 * (n % NRING)
    e(f'    ds_read_b128 v[{r}:{r+3}], v{vKRD} offset:{t*32*KSTRIDE + s*32}')
for n in range(DEPTH):
    kread(n)
for n, (t, s) in enumerate(seq):
    if n + DEPTH < len(seq):
        kread(n + DEPTH)
        e(f'    s_waitcnt lgkmcnt({DEPTH})')
    else:
        e(f'    s_waitcnt lgkmcnt({len(seq)-1-n})')
    r = RING + 4 * (n % NRING)
    c = '0' if s == 0 else f'v[{16*t}:{16*t+15}]'
    e(f'    v_mfma_f32_32x32x16_bf16 v[{16*t}:{16*t+15}], v[{r}:{r+3}], v[{QF+4*s}:{QF+4*s+3}], {c}')
e('    s_add_u32 s31, s30, 0')
e('    s_add_u32 s30, s30, 65536')
e('    s_cmp_lt_u32 s29, 3')
e('    s_cbranch_scc0 L_noq')
for s in range(8):
    e(f'    buffer_load_dwordx4 v[{QF+4*s}:{QF+4*s+3}], v{vQOFF}, s[12:15], s30 offen offset:{s*32}')
e('L_noq:')
e(f'    v_max3_f32 v{vM}, v0, v1, v2')
for j in range(3, 127, 2):
    e(f'    v_max3_f32 v{vM}, v{vM}, v{j}, v{j+1}')
e(f'    v_max_f32 v{vM}, v{vM}, v127')
e(f'    v_mov_b32 v{vT}, v{vM}')
e('    s_nop 1')
e(f'    v_permlane32_swap_b32 v{vM}, v{vT}')
e(f'    v_max_f32 v{vM}, v{vM}, v{vT}')
e(f'    v_mul_f32 v{vMC}, s32, v{vM}')
e(f'    v_mov_b32 v{vL0}, 0')
e(f'    v_mov_b32 v{vL1}, 0')
e(f'    v_mov_b32 v{vL2}, 0')
e(f'    v_mov_b32 v{vL3}, 0')
for g in range(32):
    b = 4 * g
    for j in range(4):
        e(f'    v_fma_f32 v{b+j}, v{b+j}, s32, -v{vMC}')
    for j in range(4):
        e(f'    v_exp_f32 v{b+j}, v{b+j}')
    for j in range(4):
        e(f'    v_add_f32 v{vL0+j}, v{vL0+j}, v{b+j}')
    e(f'    v_cvt_pk_bf16_f32 v{b//2}, v{b}, v{b+1}')
    e(f'    v_cvt_pk_bf16_f32 v{b//2+1}, v{b+2}, v{b+3}')
e(f'    v_add_f32 v{vL0}, v{vL0}, v{vL1}')
e(f'    v_add_f32 v{vL2}, v{vL2}, v{vL3}')
e(f'    v_add_f32 v{vL0}, v{vL0}, v{vL2}')
e(f'    v_mov_b32 v{vT}, v{vL0}')
e('    s_nop 1')
e(f'    v_permlane32_swap_b32 v{vL0}, v{vT}')
e(f'    v_add_f32 v{vL0}, v{vL0}, v{vT}')
e(f'    v_rcp_f32 v{vR}, v{vL0}')
seq2 = [(t, u, dt) for t in range(8) for u in range(2) for dt in range(4)]
def vread(n):
    t, u, dt = seq2[n]
    r = RING + 4 * (n % NRING)
    base = vVRD0 if t < 4 else vVRD1
    tt = t % 4
    for jj in range(2):
        off = (32 * tt + 16 * u + 8 * jj) * VSTRIDE + dt * 64
        e(f'    ds_read_b64_tr_b16 v[{r+2*jj}:{r+2*jj+1}], v{base} offset:{off}')
for n in range(DEPTH):
    vread(n)
for n, (t, u, dt) in enumerate(seq2):
    if n + DEPTH < len(seq2):
        vread(n + DEPTH)
        e(f'    s_waitcnt lgkmcnt({2*DEPTH})')
    else:
        e(f'    s_waitcnt lgkmcnt({2*(len(seq2)-1-n)})')
    r = RING + 4 * (n % NRING)
    first = (t == 0 and u == 0)
    c = '0' if first else f'v[{64+16*dt}:{64+16*dt+15}]'
    p = 8 * t + 4 * u
    e(f'    v_mfma_f32_32x32x16_bf16 v[{64+16*dt}:{64+16*dt+15}], v[{r}:{r+3}], v[{p}:{p+3}], {c}')
e('    s_nop 15')
for dt in range(4):
    for kk in range(2):
        b = 64 + 16 * dt + 8 * kk
        pk = PK + 4 * ((2 * dt + kk) % 8)
        for j in range(8):
            e(f'    v_mul_f32 v{b+j}, v{b+j}, v{vR}')
        e(f'    v_cvt_pk_bf16_f32 v{pk}, v{b}, v{b+1}')
        e(f'    v_cvt_pk_bf16_f32 v{pk+1}, v{b+2}, v{b+3}')
        e(f'    v_cvt_pk_bf16_f32 v{pk+2}, v{b+4}, v{b+5}')
        e(f'    v_cvt_pk_bf16_f32 v{pk+3}, v{b+6}, v{b+7}')
        e('    s_nop 1')
        e(f'    v_permlane32_swap_b32 v{pk}, v{pk+2}')
        e(f'    v_permlane32_swap_b32 v{pk+1}, v{pk+3}')
        e(f'    buffer_store_dwordx4 v[{pk}:{pk+3}], v{vQOFF}, s[24:27], s31 offen offset:{64*dt + 32*kk}')
e('    s_add_u32 s29, s29, 1')
e('    s_cmp_lt_u32 s29, 4')
e('    s_waitcnt vmcnt(8)')
e('    s_cbranch_scc1 L_loop')
e('L_done:')
e('    s_endpgm')
e('.section .rodata,"a"')
e('.p2align 6')
e('.amdhsa_kernel standalone__gqa_softmax__near_ridge_kernel')
e('  .amdhsa_next_free_vgpr 256')
e('  .amdhsa_next_free_sgpr 48')
e('  .amdhsa_accum_offset 256')
e('  .amdhsa_group_segment_fixed_size 0')
e('  .amdhsa_kernarg_size 48')
e('  .amdhsa_user_sgpr_count 2')
e('  .amdhsa_user_sgpr_kernarg_segment_ptr 1')
e('  .amdhsa_system_sgpr_workgroup_id_x 1')
e('.end_amdhsa_kernel')

path = sys.argv[1] if len(sys.argv) > 1 else 'standalone__gqa_softmax__near_ridge.s'
open(path, 'w').write('\n'.join(out) + '\n')
print('wrote', path, len(out), 'lines')
```

```python
import struct, sys

VBASE = 65536
LDS_BYTES = 131072
Q_BYTES = 64 * 32 * 256 * 128 * 2
KV_BYTES = 64 * 8 * 256 * 128 * 2

def f32bits(x):
    return struct.unpack('<I', struct.pack('<f', x))[0]
SCALE_LOG2E = (128 ** -0.5) * 1.4426950408889634

out = []
def e(s=''):
    out.append(s)

class VM:
    def __init__(self):
        self.q = []
    def issue(self, tag, n=1):
        self.q.extend([tag] * n)
    def after(self, tag):
        last = max(i for i, t in enumerate(self.q) if t == tag)
        return len(self.q) - 1 - last

HEADER = open('standalone__gqa_softmax__near_ridge.s.ref').read().split('; @launch')[0]
e(HEADER.rstrip('\n'))
e(f'; @launch grid=(256,1,1) block=(512,1,1) lds={LDS_BYTES}')
e('.amdgcn_target "amdgcn-amd-amdhsa--gfx950"')
e('.text')
e('.globl standalone__gqa_softmax__near_ridge_kernel')
e('.p2align 8')
e('.type standalone__gqa_softmax__near_ridge_kernel,@function')
e('standalone__gqa_softmax__near_ridge_kernel:')

QF = 128
RING = 160; NRING = 8
PK = RING
vKA = 192
vVA = 200
vQOFF = 204
vKDS = 205
vVDS = 209
vM = 210; vT = 211; vMC = 212
vL0 = 213; vL1 = 214; vL2 = 215; vL3 = 216
vR = 217
NV = 218

e('    s_cmp_ge_u32 s2, 256')
e('    s_cbranch_scc1 L_done')
e('    s_load_dwordx4 s[4:7], s[0:1], 0')
e('    s_load_dwordx4 s[8:11], s[0:1], 16')
e('    v_lshrrev_b32 v1, 6, v0')
e('    v_and_b32 v2, 63, v0')
e('    v_readfirstlane_b32 s28, v1')
e('    s_waitcnt lgkmcnt(0)')
for (srd, ptr, nb) in ((12, 4, Q_BYTES), (16, 6, KV_BYTES), (20, 8, KV_BYTES), (24, 10, Q_BYTES)):
    e(f'    s_mov_b32 s{srd}, s{ptr}')
    e(f'    s_and_b32 s{srd+1}, s{ptr+1}, 0xffff')
    e(f'    s_mov_b32 s{srd+2}, {nb}')
    e(f'    s_mov_b32 s{srd+3}, 0x00020000')
e(f'    s_mov_b32 s32, {f32bits(SCALE_LOG2E):#x}')
e('    v_and_b32 v3, 31, v2')
e('    v_lshrrev_b32 v4, 5, v2')
e('    v_and_b32 v5, 15, v2')
e('    v_lshrrev_b32 v6, 4, v2')
e('    v_and_b32 v9, 15, v3')
e('    v_lshlrev_b32 v7, 8, v3')
for s in range(8):
    e(f'    v_xor_b32 v8, {2*s}, v4')
    e(f'    v_xor_b32 v8, v8, v9')
    e(f'    v_lshl_add_u32 v{vKA+s}, v8, 4, v7')
e('    v_lshrrev_b32 v10, 2, v5')
e('    v_lshl_add_u32 v11, v4, 2, v10')
e('    v_lshlrev_b32 v11, 8, v11')
e(f'    v_add_u32 v11, {VBASE}, v11')
e('    v_and_b32 v12, 1, v6')
e('    v_and_b32 v13, 3, v2')
e('    v_lshrrev_b32 v13, 1, v13')
e('    v_lshl_add_u32 v13, v12, 1, v13')
e('    v_lshlrev_b32 v14, 2, v10')
e('    v_and_b32 v15, 1, v2')
e('    v_lshlrev_b32 v15, 3, v15')
for dt in range(4):
    e(f'    v_xor_b32 v16, {4*dt}, v13')
    e(f'    v_xor_b32 v16, v16, v14')
    e(f'    v_lshl_add_u32 v16, v16, 4, v15')
    e(f'    v_add_u32 v{vVA+dt}, v11, v16')
e(f'    v_lshlrev_b32 v{vQOFF}, 8, v3')
e(f'    v_lshl_add_u32 v{vQOFF}, v4, 4, v{vQOFF}')
e('    v_lshlrev_b32 v16, 8, v6')
for jj in range(4):
    e(f'    v_add_u32 v17, {4*jj}, v6')
    e('    v_and_b32 v17, 15, v17')
    e('    v_xor_b32 v17, v17, v5')
    e(f'    v_lshl_add_u32 v{vKDS+jj}, v17, 4, v16')
e('    v_and_b32 v17, 3, v6')
e('    v_lshlrev_b32 v17, 2, v17')
e('    v_xor_b32 v17, v17, v5')
e(f'    v_lshl_add_u32 v{vVDS}, v17, 4, v16')
e('    s_lshl_b32 s35, s28, 13')
e('    s_lshl_b32 s34, s2, 16')
e('    s_add_u32 s34, s34, s35')
e('    s_add_u32 s36, s34, 4096')
e('    s_lshl_b32 s30, s2, 18')
e('    s_add_u32 s30, s30, s35')
e('    s_mov_b32 s29, 0')

vm = VM()

def kv_dma(which, tag):
    srd = 's[16:19]' if which == 'K' else 's[20:23]'
    lbase = 0 if which == 'K' else VBASE
    e(f'    s_add_u32 s37, s35, {lbase}')
    e('    s_mov_b32 m0, s37')
    e('    s_nop 0')
    for j in range(4):
        va = f'v{vKDS+j}' if which == 'K' else f'v{vVDS}'
        e(f'    buffer_load_dwordx4 {va}, {srd}, s34 offen offset:{j*1024} lds')
    e(f'    s_add_u32 s37, s35, {lbase+4096}')
    e('    s_mov_b32 m0, s37')
    e('    s_nop 0')
    for j in range(4):
        va = f'v{vKDS+j}' if which == 'K' else f'v{vVDS}'
        e(f'    buffer_load_dwordx4 {va}, {srd}, s36 offen offset:{j*1024} lds')
    vm.issue(tag, 8)

def q_loads():
    for s in range(8):
        e(f'    buffer_load_dwordx4 v[{QF+4*s}:{QF+4*s+3}], v{vQOFF}, s[12:15], s30 offen offset:{s*32}')
    vm.issue('Q', 8)

kv_dma('K', 'K')
q_loads()
kv_dma('V', 'V')
e(f'    s_waitcnt vmcnt({vm.after("Q")})')
e('    s_barrier')
e('    s_branch L_it0body')
e('L_loop:')
e('    s_waitcnt vmcnt(%d)' % 99)
W0_IDX = len(out) - 1
e('L_it0body:')

DEPTH = 4
kseq = [(t, s) for t in range(8) for s in range(8)]
vseq = [(t, u, dt) for t in range(8) for u in range(2) for dt in range(4)]

def gen_iteration(it):
    last = (it == 3)
    def kread(n):
        t, s = kseq[n]
        r = RING + 4 * (n % NRING)
        e(f'    ds_read_b128 v[{r}:{r+3}], v{vKA+s} offset:{t*8192}')
    for n in range(DEPTH):
        kread(n)
    for n, (t, s) in enumerate(kseq):
        if n + DEPTH < len(kseq):
            kread(n + DEPTH)
            e(f'    s_waitcnt lgkmcnt({DEPTH})')
        else:
            e(f'    s_waitcnt lgkmcnt({len(kseq)-1-n})')
        r = RING + 4 * (n % NRING)
        c = '0' if s == 0 else f'v[{16*t}:{16*t+15}]'
        e(f'    v_mfma_f32_32x32x16_bf16 v[{16*t}:{16*t+15}], v[{r}:{r+3}], v[{QF+4*s}:{QF+4*s+3}], {c}')
    e('    s_add_u32 s31, s30, 0')
    if not last:
        e('    s_add_u32 s30, s30, 65536')
        q_loads()
    else:
        e('    s_add_u32 s30, s30, %d' % ((1024 - 3) * 65536))
        e('    s_cmp_lt_u32 s29, 1')
        e('    s_cbranch_scc0 L_skipq')
        q_loads()
        vm.q[-8:] = ['Qn'] * 8
        e('L_skipq:')
        e('    s_barrier')
        e('    s_add_u32 s34, s34, %d' % (256 * 65536))
        e('    s_add_u32 s36, s36, %d' % (256 * 65536))
        e('    s_cmp_lt_u32 s29, 1')
        e('    s_cbranch_scc0 L_skipk')
        kv_dma('K', 'Kn')
        e('L_skipk:')
    e(f'    v_max3_f32 v{vM}, v0, v1, v2')
    for j in range(3, 127, 2):
        e(f'    v_max3_f32 v{vM}, v{vM}, v{j}, v{j+1}')
    e(f'    v_max_f32 v{vM}, v{vM}, v127')
    e(f'    v_mov_b32 v{vT}, v{vM}')
    e('    s_nop 1')
    e(f'    v_permlane32_swap_b32 v{vM}, v{vT}')
    e(f'    v_max_f32 v{vM}, v{vM}, v{vT}')
    e(f'    v_mul_f32 v{vMC}, s32, v{vM}')
    e(f'    v_mov_b32 v{vL0}, 0')
    e(f'    v_mov_b32 v{vL1}, 0')
    e(f'    v_mov_b32 v{vL2}, 0')
    e(f'    v_mov_b32 v{vL3}, 0')
    for g in range(32):
        b = 4 * g
        for j in range(4):
            e(f'    v_fma_f32 v{b+j}, v{b+j}, s32, -v{vMC}')
        for j in range(4):
            e(f'    v_exp_f32 v{b+j}, v{b+j}')
        for j in range(4):
            e(f'    v_add_f32 v{vL0+j}, v{vL0+j}, v{b+j}')
        e(f'    v_cvt_pk_bf16_f32 v{b//2}, v{b}, v{b+1}')
        e(f'    v_cvt_pk_bf16_f32 v{b//2+1}, v{b+2}, v{b+3}')
    e(f'    v_add_f32 v{vL0}, v{vL0}, v{vL1}')
    e(f'    v_add_f32 v{vL2}, v{vL2}, v{vL3}')
    e(f'    v_add_f32 v{vL0}, v{vL0}, v{vL2}')
    e(f'    v_mov_b32 v{vT}, v{vL0}')
    e('    s_nop 1')
    e(f'    v_permlane32_swap_b32 v{vL0}, v{vT}')
    e(f'    v_add_f32 v{vL0}, v{vL0}, v{vT}')
    e(f'    v_rcp_f32 v{vR}, v{vL0}')
    if it == 0:
        e('    s_waitcnt vmcnt(8)')
        e('    s_barrier')
    def vread(n):
        t, u, dt = vseq[n]
        r = RING + 4 * (n % NRING)
        for jj in range(2):
            off = (32 * t + 16 * u + 8 * jj) * 256
            e(f'    ds_read_b64_tr_b16 v[{r+2*jj}:{r+2*jj+1}], v{vVA+dt} offset:{off}')
    for n in range(DEPTH):
        vread(n)
    for n, (t, u, dt) in enumerate(vseq):
        if n + DEPTH < len(vseq):
            vread(n + DEPTH)
            e(f'    s_waitcnt lgkmcnt({2*DEPTH})')
        else:
            e(f'    s_waitcnt lgkmcnt({2*(len(vseq)-1-n)})')
        r = RING + 4 * (n % NRING)
        first = (t == 0 and u == 0)
        c = '0' if first else f'v[{64+16*dt}:{64+16*dt+15}]'
        p = 8 * t + 4 * u
        e(f'    v_mfma_f32_32x32x16_bf16 v[{64+16*dt}:{64+16*dt+15}], v[{r}:{r+3}], v[{p}:{p+3}], {c}')
    e('    s_nop 15')
    for dt in range(4):
        for kk in range(2):
            b = 64 + 16 * dt + 8 * kk
            pk = PK + 4 * ((2 * dt + kk) % 8)
            for j in range(8):
                e(f'    v_mul_f32 v{b+j}, v{b+j}, v{vR}')
            e(f'    v_cvt_pk_bf16_f32 v{pk}, v{b}, v{b+1}')
            e(f'    v_cvt_pk_bf16_f32 v{pk+1}, v{b+2}, v{b+3}')
            e(f'    v_cvt_pk_bf16_f32 v{pk+2}, v{b+4}, v{b+5}')
            e(f'    v_cvt_pk_bf16_f32 v{pk+3}, v{b+6}, v{b+7}')
            e('    s_nop 1')
            e(f'    v_permlane32_swap_b32 v{pk}, v{pk+2}')
            e(f'    v_permlane32_swap_b32 v{pk+1}, v{pk+3}')
            e(f'    buffer_store_dwordx4 v[{pk}:{pk+3}], v{vQOFF}, s[24:27], s31 offen offset:{64*dt + 32*kk}')
            vm.issue('st')
    if last:
        e(f'    s_waitcnt vmcnt({vm.after("Kn")})')
        e('    s_barrier')
        e('    s_cmp_lt_u32 s29, 1')
        e('    s_cbranch_scc0 L_skipv')
        kv_dma('V', 'Vn')
        e('L_skipv:')
    return

for it in range(4):
    if it > 0:
        e(f'    s_waitcnt vmcnt({vm.after("Q")})')
    gen_iteration(it)
e('    s_add_u32 s29, s29, 1')
e('    s_cmp_lt_u32 s29, 2')
e('    s_cbranch_scc1 L_loop')
out[W0_IDX] = '    s_waitcnt vmcnt(40)'
e('L_done:')
e('    s_endpgm')
e('.section .rodata,"a"')
e('.p2align 6')
e('.amdhsa_kernel standalone__gqa_softmax__near_ridge_kernel')
e('  .amdhsa_next_free_vgpr 256')
e('  .amdhsa_next_free_sgpr 48')
e('  .amdhsa_accum_offset 256')
e('  .amdhsa_group_segment_fixed_size 0')
e('  .amdhsa_kernarg_size 48')
e('  .amdhsa_user_sgpr_count 2')
e('  .amdhsa_user_sgpr_kernarg_segment_ptr 1')
e('  .amdhsa_system_sgpr_workgroup_id_x 1')
e('.end_amdhsa_kernel')

path = sys.argv[1] if len(sys.argv) > 1 else 'standalone__gqa_softmax__near_ridge.s'
open(path, 'w').write('\n'.join(out) + '\n')
print('wrote', path, len(out), 'lines')
```

```python
import struct, sys

VBASE = 65536
LDS_BYTES = 131072
Q_BYTES = 64 * 32 * 256 * 128 * 2
KV_BYTES = 64 * 8 * 256 * 128 * 2

def f32bits(x):
    return struct.unpack('<I', struct.pack('<f', x))[0]
SCALE_LOG2E = (128 ** -0.5) * 1.4426950408889634

out = []
def e(s=''):
    out.append(s)

class VM:
    def __init__(self):
        self.q = []
    def issue(self, tag, n=1):
        self.q.extend([tag] * n)
    def after(self, tag):
        last = max(i for i, t in enumerate(self.q) if t == tag)
        return len(self.q) - 1 - last

HEADER = open('standalone__gqa_softmax__near_ridge.s.ref').read().split('; @launch')[0]
e(HEADER.rstrip('\n'))
e(f'; @launch grid=(256,1,1) block=(512,1,1) lds={LDS_BYTES}')
e('.amdgcn_target "amdgcn-amd-amdhsa--gfx950"')
e('.text')
e('.globl standalone__gqa_softmax__near_ridge_kernel')
e('.p2align 8')
e('.type standalone__gqa_softmax__near_ridge_kernel,@function')
e('standalone__gqa_softmax__near_ridge_kernel:')

QF = 128
RING = 160; NRING = 8
PK = RING
vKA = 192
vVA = 200
vQOFF = 204
vKDS = 205
vVDS = 209
vM = 210; vT = 211; vMC = 212
vL0 = 213; vL1 = 214; vL2 = 215; vL3 = 216
vR = 217
NV = 218

e('    s_cmp_ge_u32 s2, 256')
e('    s_cbranch_scc1 L_done')
e('    s_load_dwordx4 s[4:7], s[0:1], 0')
e('    s_load_dwordx4 s[8:11], s[0:1], 16')
e('    v_lshrrev_b32 v1, 6, v0')
e('    v_and_b32 v2, 63, v0')
e('    v_readfirstlane_b32 s28, v1')
e('    s_waitcnt lgkmcnt(0)')
for (srd, ptr, nb) in ((12, 4, Q_BYTES), (16, 6, KV_BYTES), (20, 8, KV_BYTES), (24, 10, Q_BYTES)):
    e(f'    s_mov_b32 s{srd}, s{ptr}')
    e(f'    s_and_b32 s{srd+1}, s{ptr+1}, 0xffff')
    e(f'    s_mov_b32 s{srd+2}, {nb}')
    e(f'    s_mov_b32 s{srd+3}, 0x00020000')
e(f'    s_mov_b32 s32, {f32bits(SCALE_LOG2E):#x}')
e('    v_and_b32 v3, 31, v2')
e('    v_lshrrev_b32 v4, 5, v2')
e('    v_and_b32 v5, 15, v2')
e('    v_lshrrev_b32 v6, 4, v2')
e('    v_and_b32 v9, 15, v3')
e('    v_lshlrev_b32 v7, 8, v3')
for s in range(8):
    e(f'    v_xor_b32 v8, {2*s}, v4')
    e(f'    v_xor_b32 v8, v8, v9')
    e(f'    v_lshl_add_u32 v{vKA+s}, v8, 4, v7')
e('    v_lshrrev_b32 v10, 2, v5')
e('    v_lshl_add_u32 v11, v4, 2, v10')
e('    v_lshlrev_b32 v11, 8, v11')
e(f'    v_add_u32 v11, {VBASE}, v11')
e('    v_and_b32 v12, 1, v6')
e('    v_and_b32 v13, 3, v2')
e('    v_lshrrev_b32 v13, 1, v13')
e('    v_lshl_add_u32 v13, v12, 1, v13')
e('    v_lshlrev_b32 v14, 2, v10')
e('    v_and_b32 v15, 1, v2')
e('    v_lshlrev_b32 v15, 3, v15')
for dt in range(4):
    e(f'    v_xor_b32 v16, {4*dt}, v13')
    e(f'    v_xor_b32 v16, v16, v14')
    e(f'    v_lshl_add_u32 v16, v16, 4, v15')
    e(f'    v_add_u32 v{vVA+dt}, v11, v16')
e(f'    v_lshlrev_b32 v{vQOFF}, 8, v3')
e(f'    v_lshl_add_u32 v{vQOFF}, v4, 4, v{vQOFF}')
e('    v_lshlrev_b32 v16, 8, v6')
for jj in range(4):
    e(f'    v_add_u32 v17, {4*jj}, v6')
    e('    v_and_b32 v17, 15, v17')
    e('    v_xor_b32 v17, v17, v5')
    e(f'    v_lshl_add_u32 v{vKDS+jj}, v17, 4, v16')
e('    v_and_b32 v17, 3, v6')
e('    v_lshlrev_b32 v17, 2, v17')
e('    v_xor_b32 v17, v17, v5')
e(f'    v_lshl_add_u32 v{vVDS}, v17, 4, v16')
e('    s_lshl_b32 s35, s28, 13')
e('    s_lshl_b32 s34, s2, 16')
e('    s_add_u32 s34, s34, s35')
e('    s_add_u32 s36, s34, 4096')
e('    s_lshl_b32 s30, s2, 18')
e('    s_add_u32 s30, s30, s35')
e('    s_mov_b32 s29, 0')

vm = VM()

def kv_dma(which, tag):
    srd = 's[16:19]' if which == 'K' else 's[20:23]'
    lbase = 0 if which == 'K' else VBASE
    e(f'    s_add_u32 s37, s35, {lbase}')
    e('    s_mov_b32 m0, s37')
    e('    s_nop 0')
    for j in range(4):
        va = f'v{vKDS+j}' if which == 'K' else f'v{vVDS}'
        e(f'    buffer_load_dwordx4 {va}, {srd}, s34 offen offset:{j*1024} lds')
    e(f'    s_add_u32 s37, s35, {lbase+4096}')
    e('    s_mov_b32 m0, s37')
    e('    s_nop 0')
    for j in range(4):
        va = f'v{vKDS+j}' if which == 'K' else f'v{vVDS}'
        e(f'    buffer_load_dwordx4 {va}, {srd}, s36 offen offset:{j*1024} lds')
    vm.issue(tag, 8)

def q_loads():
    for s in range(8):
        e(f'    buffer_load_dwordx4 v[{QF+4*s}:{QF+4*s+3}], v{vQOFF}, s[12:15], s30 offen offset:{s*32}')
    vm.issue('Q', 8)

kv_dma('K', 'K')
q_loads()
kv_dma('V', 'V')
e(f'    s_waitcnt vmcnt({vm.after("Q")})')
e('    s_barrier')
e('    s_memtime s[40:41]')
e('    s_branch L_it0body')
e('L_loop:')
e('    s_waitcnt vmcnt(%d)' % 99)
W0_IDX = len(out) - 1
e('L_it0body:')

DEPTH = 4
kseq = [(t, s) for t in range(8) for s in range(8)]
vseq = [(t, u, dt) for t in range(8) for u in range(2) for dt in range(4)]

def gen_iteration(it):
    last = (it == 3)
    def kread(n):
        t, s = kseq[n]
        r = RING + 4 * (n % NRING)
        e(f'    ds_read_b128 v[{r}:{r+3}], v{vKA+s} offset:{t*8192}')
    for n in range(DEPTH):
        kread(n)
    for n, (t, s) in enumerate(kseq):
        if n + DEPTH < len(kseq):
            kread(n + DEPTH)
            e(f'    s_waitcnt lgkmcnt({DEPTH})')
        else:
            e(f'    s_waitcnt lgkmcnt({len(kseq)-1-n})')
        r = RING + 4 * (n % NRING)
        c = '0' if s == 0 else f'v[{16*t}:{16*t+15}]'
        e(f'    v_mfma_f32_32x32x16_bf16 v[{16*t}:{16*t+15}], v[{r}:{r+3}], v[{QF+4*s}:{QF+4*s+3}], {c}')
    e('    s_add_u32 s31, s30, 0')
    if not last:
        e('    s_add_u32 s30, s30, 65536')
        q_loads()
    else:
        e('    s_add_u32 s30, s30, %d' % ((1024 - 3) * 65536))
        e('    s_cmp_lt_u32 s29, 1')
        e('    s_cbranch_scc0 L_skipq')
        q_loads()
        vm.q[-8:] = ['Qn'] * 8
        e('L_skipq:')
        e('    s_barrier')
        e('    s_add_u32 s34, s34, %d' % (256 * 65536))
        e('    s_add_u32 s36, s36, %d' % (256 * 65536))
        e('    s_cmp_lt_u32 s29, 1')
        e('    s_cbranch_scc0 L_skipk')
        kv_dma('K', 'Kn')
        e('L_skipk:')
    e(f'    v_max3_f32 v{vM}, v0, v1, v2')
    for j in range(3, 127, 2):
        e(f'    v_max3_f32 v{vM}, v{vM}, v{j}, v{j+1}')
    e(f'    v_max_f32 v{vM}, v{vM}, v127')
    e(f'    v_mov_b32 v{vT}, v{vM}')
    e('    s_nop 1')
    e(f'    v_permlane32_swap_b32 v{vM}, v{vT}')
    e(f'    v_max_f32 v{vM}, v{vM}, v{vT}')
    e(f'    v_mul_f32 v{vMC}, s32, v{vM}')
    e(f'    v_mov_b32 v{vL0}, 0')
    e(f'    v_mov_b32 v{vL1}, 0')
    e(f'    v_mov_b32 v{vL2}, 0')
    e(f'    v_mov_b32 v{vL3}, 0')
    for g in range(32):
        b = 4 * g
        for j in range(4):
            e(f'    v_fma_f32 v{b+j}, v{b+j}, s32, -v{vMC}')
        for j in range(4):
            e(f'    v_exp_f32 v{b+j}, v{b+j}')
        for j in range(4):
            e(f'    v_add_f32 v{vL0+j}, v{vL0+j}, v{b+j}')
        e(f'    v_cvt_pk_bf16_f32 v{b//2}, v{b}, v{b+1}')
        e(f'    v_cvt_pk_bf16_f32 v{b//2+1}, v{b+2}, v{b+3}')
    e(f'    v_add_f32 v{vL0}, v{vL0}, v{vL1}')
    e(f'    v_add_f32 v{vL2}, v{vL2}, v{vL3}')
    e(f'    v_add_f32 v{vL0}, v{vL0}, v{vL2}')
    e(f'    v_mov_b32 v{vT}, v{vL0}')
    e('    s_nop 1')
    e(f'    v_permlane32_swap_b32 v{vL0}, v{vT}')
    e(f'    v_add_f32 v{vL0}, v{vL0}, v{vT}')
    e(f'    v_rcp_f32 v{vR}, v{vL0}')
    if it == 0:
        e('    s_waitcnt vmcnt(8)')
        e('    s_barrier')
    def vread(n):
        t, u, dt = vseq[n]
        r = RING + 4 * (n % NRING)
        for jj in range(2):
            off = (32 * t + 16 * u + 8 * jj) * 256
            e(f'    ds_read_b64_tr_b16 v[{r+2*jj}:{r+2*jj+1}], v{vVA+dt} offset:{off}')
    for n in range(DEPTH):
        vread(n)
    for n, (t, u, dt) in enumerate(vseq):
        if n + DEPTH < len(vseq):
            vread(n + DEPTH)
            e(f'    s_waitcnt lgkmcnt({2*DEPTH})')
        else:
            e(f'    s_waitcnt lgkmcnt({2*(len(vseq)-1-n)})')
        r = RING + 4 * (n % NRING)
        first = (t == 0 and u == 0)
        c = '0' if first else f'v[{64+16*dt}:{64+16*dt+15}]'
        p = 8 * t + 4 * u
        e(f'    v_mfma_f32_32x32x16_bf16 v[{64+16*dt}:{64+16*dt+15}], v[{r}:{r+3}], v[{p}:{p+3}], {c}')
    e('    s_nop 15')
    for dt in range(4):
        for kk in range(2):
            b = 64 + 16 * dt + 8 * kk
            pk = PK + 4 * ((2 * dt + kk) % 8)
            for j in range(8):
                e(f'    v_mul_f32 v{b+j}, v{b+j}, v{vR}')
            e(f'    v_cvt_pk_bf16_f32 v{pk}, v{b}, v{b+1}')
            e(f'    v_cvt_pk_bf16_f32 v{pk+1}, v{b+2}, v{b+3}')
            e(f'    v_cvt_pk_bf16_f32 v{pk+2}, v{b+4}, v{b+5}')
            e(f'    v_cvt_pk_bf16_f32 v{pk+3}, v{b+6}, v{b+7}')
            e('    s_nop 1')
            e(f'    v_permlane32_swap_b32 v{pk}, v{pk+2}')
            e(f'    v_permlane32_swap_b32 v{pk+1}, v{pk+3}')
            e(f'    buffer_store_dwordx4 v[{pk}:{pk+3}], v{vQOFF}, s[24:27], s31 offen offset:{64*dt + 32*kk}')
            vm.issue('st')
    if last:
        e(f'    s_waitcnt vmcnt({vm.after("Kn")})')
        e('    s_barrier')
        e('    s_cmp_lt_u32 s29, 1')
        e('    s_cbranch_scc0 L_skipv')
        kv_dma('V', 'Vn')
        e('L_skipv:')
    if it < 4:
        e('    s_memtime s[52:53]')
        e('    s_cmp_eq_u32 s29, 0')
        e('    s_cbranch_scc0 L_nost%d' % it)
        e('    s_waitcnt lgkmcnt(0)')
        e(f'    s_mov_b32 s{42+2*it}, s52')
        e(f'    s_mov_b32 s{43+2*it}, s53')
        e('L_nost%d:' % it)
    return

for it in range(4):
    if it > 0:
        e(f'    s_waitcnt vmcnt({vm.after("Q")})')
    gen_iteration(it)
e('    s_add_u32 s29, s29, 1')
e('    s_cmp_lt_u32 s29, 2')
e('    s_cbranch_scc1 L_loop')
out[W0_IDX] = '    s_waitcnt vmcnt(40)'
e('    s_memtime s[50:51]')
e('    s_waitcnt lgkmcnt(0)')
e('    s_load_dwordx2 s[54:55], s[0:1], 32')
e('    s_waitcnt lgkmcnt(0)')
e('    s_mov_b32 s56, s54')
e('    s_and_b32 s57, s55, 0xffff')
e('    s_mov_b32 s58, 256')
e('    s_mov_b32 s59, 0x00020000')
e('    v_mov_b32 v244, 0')
e('    s_cmp_eq_u32 s28, 0')
e('    s_cbranch_scc0 L_done')
e('    s_cmp_eq_u32 s2, 5')
e('    s_cbranch_scc0 L_done')
for i in range(6):
    e(f'    v_mov_b32 v245, s{40+2*i}')
    e(f'    buffer_store_dword v245, v244, s[56:59], 0 offen offset:{4*i}')
e('    s_waitcnt vmcnt(0)')
e('L_done:')
e('    s_endpgm')
e('.section .rodata,"a"')
e('.p2align 6')
e('.amdhsa_kernel standalone__gqa_softmax__near_ridge_kernel')
e('  .amdhsa_next_free_vgpr 256')
e('  .amdhsa_next_free_sgpr 64')
e('  .amdhsa_accum_offset 256')
e('  .amdhsa_group_segment_fixed_size 0')
e('  .amdhsa_kernarg_size 48')
e('  .amdhsa_user_sgpr_count 2')
e('  .amdhsa_user_sgpr_kernarg_segment_ptr 1')
e('  .amdhsa_system_sgpr_workgroup_id_x 1')
e('.end_amdhsa_kernel')

path = sys.argv[1] if len(sys.argv) > 1 else 'standalone__gqa_softmax__near_ridge.s'
open(path, 'w').write('\n'.join(out) + '\n')
print('wrote', path, len(out), 'lines')
```

```python
import struct, sys

VBASE = 65536
LDS_BYTES = 131072
Q_BYTES = 64 * 32 * 256 * 128 * 2
KV_BYTES = 64 * 8 * 256 * 128 * 2

def f32bits(x):
    return struct.unpack('<I', struct.pack('<f', x))[0]
SCALE_LOG2E = (128 ** -0.5) * 1.4426950408889634

out = []
def e(s=''):
    out.append(s)

class VM:
    def __init__(self):
        self.q = []
    def issue(self, tag, n=1):
        self.q.extend([tag] * n)
    def after(self, tag):
        last = max(i for i, t in enumerate(self.q) if t == tag)
        return len(self.q) - 1 - last

HEADER = open('standalone__gqa_softmax__near_ridge.s.ref').read().split('; @launch')[0]
e(HEADER.rstrip('\n'))
e(f'; @launch grid=(256,1,1) block=(512,1,1) lds={LDS_BYTES}')
e('.amdgcn_target "amdgcn-amd-amdhsa--gfx950"')
e('.text')
e('.globl standalone__gqa_softmax__near_ridge_kernel')
e('.p2align 8')
e('.type standalone__gqa_softmax__near_ridge_kernel,@function')
e('standalone__gqa_softmax__near_ridge_kernel:')

QF = 128
RING = 160; NRING = 8
PK = RING
vKA = 192
vVA = 200
vQOFF = 204
vKDS = 205
vVDS = 209
vM = 210; vT = 211; vMC = 212
vL0 = 213; vL1 = 214; vL2 = 215; vL3 = 216
vR = 217
NV = 218

e('    s_cmp_ge_u32 s2, 256')
e('    s_cbranch_scc1 L_done')
e('    s_load_dwordx4 s[4:7], s[0:1], 0')
e('    s_load_dwordx4 s[8:11], s[0:1], 16')
e('    v_lshrrev_b32 v1, 6, v0')
e('    v_and_b32 v2, 63, v0')
e('    v_readfirstlane_b32 s28, v1')
e('    s_waitcnt lgkmcnt(0)')
for (srd, ptr, nb) in ((12, 4, Q_BYTES), (16, 6, KV_BYTES), (20, 8, KV_BYTES), (24, 10, Q_BYTES)):
    e(f'    s_mov_b32 s{srd}, s{ptr}')
    e(f'    s_and_b32 s{srd+1}, s{ptr+1}, 0xffff')
    e(f'    s_mov_b32 s{srd+2}, {nb}')
    e(f'    s_mov_b32 s{srd+3}, 0x00020000')
e(f'    s_mov_b32 s32, {f32bits(SCALE_LOG2E):#x}')
e('    v_and_b32 v3, 31, v2')
e('    v_lshrrev_b32 v4, 5, v2')
e('    v_and_b32 v5, 15, v2')
e('    v_lshrrev_b32 v6, 4, v2')
e('    v_and_b32 v9, 15, v3')
e('    v_lshlrev_b32 v7, 8, v3')
for s in range(8):
    e(f'    v_xor_b32 v8, {2*s}, v4')
    e(f'    v_xor_b32 v8, v8, v9')
    e(f'    v_lshl_add_u32 v{vKA+s}, v8, 4, v7')
e('    v_lshrrev_b32 v10, 2, v5')
e('    v_lshl_add_u32 v11, v4, 2, v10')
e('    v_lshlrev_b32 v11, 8, v11')
e(f'    v_add_u32 v11, {VBASE}, v11')
e('    v_and_b32 v12, 1, v6')
e('    v_and_b32 v13, 3, v2')
e('    v_lshrrev_b32 v13, 1, v13')
e('    v_lshl_add_u32 v13, v12, 1, v13')
e('    v_lshlrev_b32 v14, 2, v10')
e('    v_and_b32 v15, 1, v2')
e('    v_lshlrev_b32 v15, 3, v15')
for dt in range(4):
    e(f'    v_xor_b32 v16, {4*dt}, v13')
    e(f'    v_xor_b32 v16, v16, v14')
    e(f'    v_lshl_add_u32 v16, v16, 4, v15')
    e(f'    v_add_u32 v{vVA+dt}, v11, v16')
e(f'    v_lshlrev_b32 v{vQOFF}, 8, v3')
e(f'    v_lshl_add_u32 v{vQOFF}, v4, 4, v{vQOFF}')
e('    v_lshlrev_b32 v16, 8, v6')
for jj in range(4):
    e(f'    v_add_u32 v17, {4*jj}, v6')
    e('    v_and_b32 v17, 15, v17')
    e('    v_xor_b32 v17, v17, v5')
    e(f'    v_lshl_add_u32 v{vKDS+jj}, v17, 4, v16')
e('    v_and_b32 v17, 3, v6')
e('    v_lshlrev_b32 v17, 2, v17')
e('    v_xor_b32 v17, v17, v5')
e(f'    v_lshl_add_u32 v{vVDS}, v17, 4, v16')
e('    s_lshl_b32 s35, s28, 13')
e('    s_lshl_b32 s34, s2, 16')
e('    s_add_u32 s34, s34, s35')
e('    s_add_u32 s36, s34, 4096')
e('    s_lshl_b32 s30, s2, 18')
e('    s_add_u32 s30, s30, s35')
e('    s_mov_b32 s29, 0')
e('    s_cmp_ge_u32 s28, 4')
e('    s_cbranch_scc0 L_noprio')
e('    s_setprio 1')
e('L_noprio:')

vm = VM()

def kv_dma(which, tag):
    srd = 's[16:19]' if which == 'K' else 's[20:23]'
    lbase = 0 if which == 'K' else VBASE
    e(f'    s_add_u32 s37, s35, {lbase}')
    e('    s_mov_b32 m0, s37')
    e('    s_nop 0')
    for j in range(4):
        va = f'v{vKDS+j}' if which == 'K' else f'v{vVDS}'
        e(f'    buffer_load_dwordx4 {va}, {srd}, s34 offen offset:{j*1024} lds')
    e(f'    s_add_u32 s37, s35, {lbase+4096}')
    e('    s_mov_b32 m0, s37')
    e('    s_nop 0')
    for j in range(4):
        va = f'v{vKDS+j}' if which == 'K' else f'v{vVDS}'
        e(f'    buffer_load_dwordx4 {va}, {srd}, s36 offen offset:{j*1024} lds')
    vm.issue(tag, 8)

def q_loads():
    for s in range(8):
        e(f'    buffer_load_dwordx4 v[{QF+4*s}:{QF+4*s+3}], v{vQOFF}, s[12:15], s30 offen offset:{s*32}')
    vm.issue('Q', 8)

kv_dma('K', 'K')
q_loads()
kv_dma('V', 'V')
e(f'    s_waitcnt vmcnt({vm.after("Q")})')
e('    s_barrier')
e('    s_branch L_it0body')
e('L_loop:')
e('    s_waitcnt vmcnt(%d)' % 99)
W0_IDX = len(out) - 1
e('L_it0body:')

DEPTH = 4
kseq = [(t, s) for t in range(8) for s in range(8)]
vseq = [(t, u, dt) for t in range(8) for u in range(2) for dt in range(4)]

def gen_iteration(it):
    last = (it == 3)
    def kread(n):
        t, s = kseq[n]
        r = RING + 4 * (n % NRING)
        e(f'    ds_read_b128 v[{r}:{r+3}], v{vKA+s} offset:{t*8192}')
    for n in range(DEPTH):
        kread(n)
    for n, (t, s) in enumerate(kseq):
        if n + DEPTH < len(kseq):
            kread(n + DEPTH)
            e(f'    s_waitcnt lgkmcnt({DEPTH})')
        else:
            e(f'    s_waitcnt lgkmcnt({len(kseq)-1-n})')
        r = RING + 4 * (n % NRING)
        c = '0' if s == 0 else f'v[{16*t}:{16*t+15}]'
        e(f'    v_mfma_f32_32x32x16_bf16 v[{16*t}:{16*t+15}], v[{r}:{r+3}], v[{QF+4*s}:{QF+4*s+3}], {c}')
    e('    s_add_u32 s31, s30, 0')
    if not last:
        e('    s_add_u32 s30, s30, 65536')
        q_loads()
    else:
        e('    s_add_u32 s30, s30, %d' % ((1024 - 3) * 65536))
        e('    s_cmp_lt_u32 s29, 1')
        e('    s_cbranch_scc0 L_skipq')
        q_loads()
        vm.q[-8:] = ['Qn'] * 8
        e('L_skipq:')
        e('    s_barrier')
        e('    s_add_u32 s34, s34, %d' % (256 * 65536))
        e('    s_add_u32 s36, s36, %d' % (256 * 65536))
        e('    s_cmp_lt_u32 s29, 1')
        e('    s_cbranch_scc0 L_skipk')
        kv_dma('K', 'Kn')
        e('L_skipk:')
    e(f'    v_max3_f32 v{vM}, v0, v1, v2')
    for j in range(3, 127, 2):
        e(f'    v_max3_f32 v{vM}, v{vM}, v{j}, v{j+1}')
    e(f'    v_max_f32 v{vM}, v{vM}, v127')
    e(f'    v_mov_b32 v{vT}, v{vM}')
    e('    s_nop 1')
    e(f'    v_permlane32_swap_b32 v{vM}, v{vT}')
    e(f'    v_max_f32 v{vM}, v{vM}, v{vT}')
    e(f'    v_mul_f32 v{vMC}, s32, v{vM}')
    e(f'    v_mov_b32 v{vL0}, 0')
    e(f'    v_mov_b32 v{vL1}, 0')
    e(f'    v_mov_b32 v{vL2}, 0')
    e(f'    v_mov_b32 v{vL3}, 0')
    for g in range(32):
        b = 4 * g
        for j in range(4):
            e(f'    v_fma_f32 v{b+j}, v{b+j}, s32, -v{vMC}')
        for j in range(4):
            e(f'    v_exp_f32 v{b+j}, v{b+j}')
        for j in range(4):
            e(f'    v_add_f32 v{vL0+j}, v{vL0+j}, v{b+j}')
        e(f'    v_cvt_pk_bf16_f32 v{b//2}, v{b}, v{b+1}')
        e(f'    v_cvt_pk_bf16_f32 v{b//2+1}, v{b+2}, v{b+3}')
    e(f'    v_add_f32 v{vL0}, v{vL0}, v{vL1}')
    e(f'    v_add_f32 v{vL2}, v{vL2}, v{vL3}')
    e(f'    v_add_f32 v{vL0}, v{vL0}, v{vL2}')
    e(f'    v_mov_b32 v{vT}, v{vL0}')
    e('    s_nop 1')
    e(f'    v_permlane32_swap_b32 v{vL0}, v{vT}')
    e(f'    v_add_f32 v{vL0}, v{vL0}, v{vT}')
    e(f'    v_rcp_f32 v{vR}, v{vL0}')
    if it == 0:
        e('    s_waitcnt vmcnt(8)')
        e('    s_barrier')
    def vread(n):
        t, u, dt = vseq[n]
        r = RING + 4 * (n % NRING)
        for jj in range(2):
            off = (32 * t + 16 * u + 8 * jj) * 256
            e(f'    ds_read_b64_tr_b16 v[{r+2*jj}:{r+2*jj+1}], v{vVA+dt} offset:{off}')
    for n in range(DEPTH):
        vread(n)
    for n, (t, u, dt) in enumerate(vseq):
        if n + DEPTH < len(vseq):
            vread(n + DEPTH)
            e(f'    s_waitcnt lgkmcnt({2*DEPTH})')
        else:
            e(f'    s_waitcnt lgkmcnt({2*(len(vseq)-1-n)})')
        r = RING + 4 * (n % NRING)
        first = (t == 0 and u == 0)
        c = '0' if first else f'v[{64+16*dt}:{64+16*dt+15}]'
        p = 8 * t + 4 * u
        e(f'    v_mfma_f32_32x32x16_bf16 v[{64+16*dt}:{64+16*dt+15}], v[{r}:{r+3}], v[{p}:{p+3}], {c}')
    e('    s_nop 15')
    for dt in range(4):
        for kk in range(2):
            b = 64 + 16 * dt + 8 * kk
            pk = PK + 4 * ((2 * dt + kk) % 8)
            for j in range(8):
                e(f'    v_mul_f32 v{b+j}, v{b+j}, v{vR}')
            e(f'    v_cvt_pk_bf16_f32 v{pk}, v{b}, v{b+1}')
            e(f'    v_cvt_pk_bf16_f32 v{pk+1}, v{b+2}, v{b+3}')
            e(f'    v_cvt_pk_bf16_f32 v{pk+2}, v{b+4}, v{b+5}')
            e(f'    v_cvt_pk_bf16_f32 v{pk+3}, v{b+6}, v{b+7}')
            e('    s_nop 1')
            e(f'    v_permlane32_swap_b32 v{pk}, v{pk+2}')
            e(f'    v_permlane32_swap_b32 v{pk+1}, v{pk+3}')
            e(f'    buffer_store_dwordx4 v[{pk}:{pk+3}], v{vQOFF}, s[24:27], s31 offen offset:{64*dt + 32*kk}')
            vm.issue('st')
    if last:
        e(f'    s_waitcnt vmcnt({vm.after("Kn")})')
        e('    s_barrier')
        e('    s_cmp_lt_u32 s29, 1')
        e('    s_cbranch_scc0 L_skipv')
        kv_dma('V', 'Vn')
        e('L_skipv:')
    return

for it in range(4):
    if it > 0:
        e(f'    s_waitcnt vmcnt({vm.after("Q")})')
    gen_iteration(it)
e('    s_add_u32 s29, s29, 1')
e('    s_cmp_lt_u32 s29, 2')
e('    s_cbranch_scc1 L_loop')
out[W0_IDX] = '    s_waitcnt vmcnt(40)'
e('L_done:')
e('    s_endpgm')
e('.section .rodata,"a"')
e('.p2align 6')
e('.amdhsa_kernel standalone__gqa_softmax__near_ridge_kernel')
e('  .amdhsa_next_free_vgpr 256')
e('  .amdhsa_next_free_sgpr 48')
e('  .amdhsa_accum_offset 256')
e('  .amdhsa_group_segment_fixed_size 0')
e('  .amdhsa_kernarg_size 48')
e('  .amdhsa_user_sgpr_count 2')
e('  .amdhsa_user_sgpr_kernarg_segment_ptr 1')
e('  .amdhsa_system_sgpr_workgroup_id_x 1')
e('.end_amdhsa_kernel')

path = sys.argv[1] if len(sys.argv) > 1 else 'standalone__gqa_softmax__near_ridge.s'
open(path, 'w').write('\n'.join(out) + '\n')
print('wrote', path, len(out), 'lines')
```

```python
import struct, sys

VBASE = 65536
LDS_BYTES = 131072
Q_BYTES = 64 * 32 * 256 * 128 * 2
KV_BYTES = 64 * 8 * 256 * 128 * 2

def f32bits(x):
    return struct.unpack('<I', struct.pack('<f', x))[0]
SCALE_LOG2E = (128 ** -0.5) * 1.4426950408889634

out = []
def e(s=''):
    out.append(s)

class VM:
    def __init__(self):
        self.q = []
    def issue(self, tag, n=1):
        self.q.extend([tag] * n)
    def after(self, tag):
        last = max(i for i, t in enumerate(self.q) if t == tag)
        return len(self.q) - 1 - last

HEADER = open('standalone__gqa_softmax__near_ridge.s.ref').read().split('; @launch')[0]
e(HEADER.rstrip('\n'))
e(f'; @launch grid=(256,1,1) block=(512,1,1) lds={LDS_BYTES}')
e('.amdgcn_target "amdgcn-amd-amdhsa--gfx950"')
e('.text')
e('.globl standalone__gqa_softmax__near_ridge_kernel')
e('.p2align 8')
e('.type standalone__gqa_softmax__near_ridge_kernel,@function')
e('standalone__gqa_softmax__near_ridge_kernel:')

QF = 128
RING = 160; NRING = 8
PK = RING
vKA = 192
vVA = 200
vQOFF = 204
vKDS = 205
vVDS = 209
vM = 210; vT = 211; vMC = 212
vL0 = 213; vL1 = 214; vL2 = 215; vL3 = 216
vR = 217
QF2 = 218
NV = 250

e('    s_cmp_ge_u32 s2, 256')
e('    s_cbranch_scc1 L_done')
e('    s_load_dwordx4 s[4:7], s[0:1], 0')
e('    s_load_dwordx4 s[8:11], s[0:1], 16')
e('    v_lshrrev_b32 v1, 6, v0')
e('    v_and_b32 v2, 63, v0')
e('    v_readfirstlane_b32 s28, v1')
e('    s_waitcnt lgkmcnt(0)')
for (srd, ptr, nb) in ((12, 4, Q_BYTES), (16, 6, KV_BYTES), (20, 8, KV_BYTES), (24, 10, Q_BYTES)):
    e(f'    s_mov_b32 s{srd}, s{ptr}')
    e(f'    s_and_b32 s{srd+1}, s{ptr+1}, 0xffff')
    e(f'    s_mov_b32 s{srd+2}, {nb}')
    e(f'    s_mov_b32 s{srd+3}, 0x00020000')
e(f'    s_mov_b32 s32, {f32bits(SCALE_LOG2E):#x}')
e('    v_and_b32 v3, 31, v2')
e('    v_lshrrev_b32 v4, 5, v2')
e('    v_and_b32 v5, 15, v2')
e('    v_lshrrev_b32 v6, 4, v2')
e('    v_and_b32 v9, 15, v3')
e('    v_lshlrev_b32 v7, 8, v3')
for s in range(8):
    e(f'    v_xor_b32 v8, {2*s}, v4')
    e(f'    v_xor_b32 v8, v8, v9')
    e(f'    v_lshl_add_u32 v{vKA+s}, v8, 4, v7')
e('    v_lshrrev_b32 v10, 2, v5')
e('    v_lshl_add_u32 v11, v4, 2, v10')
e('    v_lshlrev_b32 v11, 8, v11')
e(f'    v_add_u32 v11, {VBASE}, v11')
e('    v_and_b32 v12, 1, v6')
e('    v_and_b32 v13, 3, v2')
e('    v_lshrrev_b32 v13, 1, v13')
e('    v_lshl_add_u32 v13, v12, 1, v13')
e('    v_lshlrev_b32 v14, 2, v10')
e('    v_and_b32 v15, 1, v2')
e('    v_lshlrev_b32 v15, 3, v15')
for dt in range(4):
    e(f'    v_xor_b32 v16, {4*dt}, v13')
    e(f'    v_xor_b32 v16, v16, v14')
    e(f'    v_lshl_add_u32 v16, v16, 4, v15')
    e(f'    v_add_u32 v{vVA+dt}, v11, v16')
e(f'    v_lshlrev_b32 v{vQOFF}, 8, v3')
e(f'    v_lshl_add_u32 v{vQOFF}, v4, 4, v{vQOFF}')
e('    v_lshlrev_b32 v16, 8, v6')
for jj in range(4):
    e(f'    v_add_u32 v17, {4*jj}, v6')
    e('    v_and_b32 v17, 15, v17')
    e('    v_xor_b32 v17, v17, v5')
    e(f'    v_lshl_add_u32 v{vKDS+jj}, v17, 4, v16')
e('    v_and_b32 v17, 3, v6')
e('    v_lshlrev_b32 v17, 2, v17')
e('    v_xor_b32 v17, v17, v5')
e(f'    v_lshl_add_u32 v{vVDS}, v17, 4, v16')
e('    s_lshl_b32 s35, s28, 13')
e('    s_lshl_b32 s34, s2, 16')
e('    s_add_u32 s34, s34, s35')
e('    s_add_u32 s36, s34, 4096')
e('    s_lshl_b32 s30, s2, 18')
e('    s_add_u32 s30, s30, s35')
e('    s_mov_b32 s29, 0')


vm = VM()

def kv_dma(which, tag):
    srd = 's[16:19]' if which == 'K' else 's[20:23]'
    lbase = 0 if which == 'K' else VBASE
    e(f'    s_add_u32 s37, s35, {lbase}')
    e('    s_mov_b32 m0, s37')
    e('    s_nop 0')
    for j in range(4):
        va = f'v{vKDS+j}' if which == 'K' else f'v{vVDS}'
        e(f'    buffer_load_dwordx4 {va}, {srd}, s34 offen offset:{j*1024} lds')
    e(f'    s_add_u32 s37, s35, {lbase+4096}')
    e('    s_mov_b32 m0, s37')
    e('    s_nop 0')
    for j in range(4):
        va = f'v{vKDS+j}' if which == 'K' else f'v{vVDS}'
        e(f'    buffer_load_dwordx4 {va}, {srd}, s36 offen offset:{j*1024} lds')
    vm.issue(tag, 8)

def q_loads(base=QF):
    for s in range(8):
        e(f'    buffer_load_dwordx4 v[{base+4*s}:{base+4*s+3}], v{vQOFF}, s[12:15], s30 offen offset:{s*32}')
    vm.issue('Q', 8)

kv_dma('K', 'K')
q_loads(QF)
kv_dma('V', 'V')
e('    s_add_u32 s30, s30, 65536')
e('    s_waitcnt vmcnt(16)')
e('    s_barrier')
e('    s_branch L_it0body')
e('L_loop:')
e('    s_waitcnt vmcnt(%d)' % 99)
W0_IDX = len(out) - 1
e('L_it0body:')

DEPTH = 4
kseq = [(t, s) for t in range(8) for s in range(8)]
vseq = [(t, u, dt) for t in range(8) for u in range(2) for dt in range(4)]

def gen_iteration(it):
    last = (it == 3)
    QS = QF if it % 2 == 0 else QF2
    QN = QF2 if it % 2 == 0 else QF
    e('    s_sub_u32 s31, s30, 65536')
    if it < 3:
        q_loads(QN)
        e('    s_add_u32 s30, s30, 65536')
    def kread(n):
        t, s = kseq[n]
        r = RING + 4 * (n % NRING)
        e(f'    ds_read_b128 v[{r}:{r+3}], v{vKA+s} offset:{t*8192}')
    for n in range(DEPTH):
        kread(n)
    for n, (t, s) in enumerate(kseq):
        if n + DEPTH < len(kseq):
            kread(n + DEPTH)
            e(f'    s_waitcnt lgkmcnt({DEPTH})')
        else:
            e(f'    s_waitcnt lgkmcnt({len(kseq)-1-n})')
        r = RING + 4 * (n % NRING)
        c = '0' if s == 0 else f'v[{16*t}:{16*t+15}]'
        e(f'    v_mfma_f32_32x32x16_bf16 v[{16*t}:{16*t+15}], v[{r}:{r+3}], v[{QS+4*s}:{QS+4*s+3}], {c}')
    if last:
        e('    s_cmp_lt_u32 s29, 1')
        e('    s_cbranch_scc0 L_skipq')
        e('    s_add_u32 s30, s30, %d' % (1020 * 65536))
        q_loads(QN)
        e('    s_add_u32 s30, s30, 65536')
        vm.q[-8:] = ['Qn'] * 8
        e('L_skipq:')
        e('    s_barrier')
        e('    s_add_u32 s34, s34, %d' % (256 * 65536))
        e('    s_add_u32 s36, s36, %d' % (256 * 65536))
        e('    s_cmp_lt_u32 s29, 1')
        e('    s_cbranch_scc0 L_skipk')
        kv_dma('K', 'Kn')
        e('L_skipk:')
    e(f'    v_max3_f32 v{vM}, v0, v1, v2')
    for j in range(3, 127, 2):
        e(f'    v_max3_f32 v{vM}, v{vM}, v{j}, v{j+1}')
    e(f'    v_max_f32 v{vM}, v{vM}, v127')
    e(f'    v_mov_b32 v{vT}, v{vM}')
    e('    s_nop 1')
    e(f'    v_permlane32_swap_b32 v{vM}, v{vT}')
    e(f'    v_max_f32 v{vM}, v{vM}, v{vT}')
    e(f'    v_mul_f32 v{vMC}, s32, v{vM}')
    e(f'    v_mov_b32 v{vL0}, 0')
    e(f'    v_mov_b32 v{vL1}, 0')
    e(f'    v_mov_b32 v{vL2}, 0')
    e(f'    v_mov_b32 v{vL3}, 0')
    for g in range(32):
        b = 4 * g
        for j in range(4):
            e(f'    v_fma_f32 v{b+j}, v{b+j}, s32, -v{vMC}')
        for j in range(4):
            e(f'    v_exp_f32 v{b+j}, v{b+j}')
        for j in range(4):
            e(f'    v_add_f32 v{vL0+j}, v{vL0+j}, v{b+j}')
        e(f'    v_cvt_pk_bf16_f32 v{b//2}, v{b}, v{b+1}')
        e(f'    v_cvt_pk_bf16_f32 v{b//2+1}, v{b+2}, v{b+3}')
    e(f'    v_add_f32 v{vL0}, v{vL0}, v{vL1}')
    e(f'    v_add_f32 v{vL2}, v{vL2}, v{vL3}')
    e(f'    v_add_f32 v{vL0}, v{vL0}, v{vL2}')
    e(f'    v_mov_b32 v{vT}, v{vL0}')
    e('    s_nop 1')
    e(f'    v_permlane32_swap_b32 v{vL0}, v{vT}')
    e(f'    v_add_f32 v{vL0}, v{vL0}, v{vT}')
    e(f'    v_rcp_f32 v{vR}, v{vL0}')
    if it == 0:
        e('    s_waitcnt vmcnt(8)')
        e('    s_barrier')
    def vread(n):
        t, u, dt = vseq[n]
        r = RING + 4 * (n % NRING)
        for jj in range(2):
            off = (32 * t + 16 * u + 8 * jj) * 256
            e(f'    ds_read_b64_tr_b16 v[{r+2*jj}:{r+2*jj+1}], v{vVA+dt} offset:{off}')
    for n in range(DEPTH):
        vread(n)
    for n, (t, u, dt) in enumerate(vseq):
        if n + DEPTH < len(vseq):
            vread(n + DEPTH)
            e(f'    s_waitcnt lgkmcnt({2*DEPTH})')
        else:
            e(f'    s_waitcnt lgkmcnt({2*(len(vseq)-1-n)})')
        r = RING + 4 * (n % NRING)
        first = (t == 0 and u == 0)
        c = '0' if first else f'v[{64+16*dt}:{64+16*dt+15}]'
        p = 8 * t + 4 * u
        e(f'    v_mfma_f32_32x32x16_bf16 v[{64+16*dt}:{64+16*dt+15}], v[{r}:{r+3}], v[{p}:{p+3}], {c}')
    e('    s_nop 15')
    for dt in range(4):
        for kk in range(2):
            b = 64 + 16 * dt + 8 * kk
            pk = PK + 4 * ((2 * dt + kk) % 8)
            for j in range(8):
                e(f'    v_mul_f32 v{b+j}, v{b+j}, v{vR}')
            e(f'    v_cvt_pk_bf16_f32 v{pk}, v{b}, v{b+1}')
            e(f'    v_cvt_pk_bf16_f32 v{pk+1}, v{b+2}, v{b+3}')
            e(f'    v_cvt_pk_bf16_f32 v{pk+2}, v{b+4}, v{b+5}')
            e(f'    v_cvt_pk_bf16_f32 v{pk+3}, v{b+6}, v{b+7}')
            e('    s_nop 1')
            e(f'    v_permlane32_swap_b32 v{pk}, v{pk+2}')
            e(f'    v_permlane32_swap_b32 v{pk+1}, v{pk+3}')
            e(f'    buffer_store_dwordx4 v[{pk}:{pk+3}], v{vQOFF}, s[24:27], s31 offen offset:{64*dt + 32*kk}')
            vm.issue('st')
    if last:
        e(f'    s_waitcnt vmcnt({vm.after("Kn")})')
        e('    s_barrier')
        e('    s_cmp_lt_u32 s29, 1')
        e('    s_cbranch_scc0 L_skipv')
        kv_dma('V', 'Vn')
        e('L_skipv:')
    return

for it in range(4):
    if it > 0:
        e(f'    s_waitcnt vmcnt({vm.after("Q")})')
    gen_iteration(it)
e('    s_add_u32 s29, s29, 1')
e('    s_cmp_lt_u32 s29, 2')
e('    s_cbranch_scc1 L_loop')
out[W0_IDX] = '    s_waitcnt vmcnt(40)'
e('L_done:')
e('    s_endpgm')
e('.section .rodata,"a"')
e('.p2align 6')
e('.amdhsa_kernel standalone__gqa_softmax__near_ridge_kernel')
e('  .amdhsa_next_free_vgpr 256')
e('  .amdhsa_next_free_sgpr 48')
e('  .amdhsa_accum_offset 256')
e('  .amdhsa_group_segment_fixed_size 0')
e('  .amdhsa_kernarg_size 48')
e('  .amdhsa_user_sgpr_count 2')
e('  .amdhsa_user_sgpr_kernarg_segment_ptr 1')
e('  .amdhsa_system_sgpr_workgroup_id_x 1')
e('.end_amdhsa_kernel')

path = sys.argv[1] if len(sys.argv) > 1 else 'standalone__gqa_softmax__near_ridge.s'
open(path, 'w').write('\n'.join(out) + '\n')
print('wrote', path, len(out), 'lines')
```

```python
import struct, sys

VBASE = 65536
LDS_BYTES = 163840
STAGE = 131072
Q_BYTES = 64 * 32 * 256 * 128 * 2
KV_BYTES = 64 * 8 * 256 * 128 * 2

def f32bits(x):
    return struct.unpack('<I', struct.pack('<f', x))[0]
SCALE_LOG2E = (128 ** -0.5) * 1.4426950408889634

out = []
def e(s=''):
    out.append(s)

class VM:
    def __init__(self):
        self.q = []
    def issue(self, tag, n=1):
        self.q.extend([tag] * n)
    def after(self, tag):
        last = max(i for i, t in enumerate(self.q) if t == tag)
        return len(self.q) - 1 - last

HEADER = open('standalone__gqa_softmax__near_ridge.s.ref').read().split('; @launch')[0]
e(HEADER.rstrip('\n'))
e(f'; @launch grid=(256,1,1) block=(512,1,1) lds={LDS_BYTES}')
e('.amdgcn_target "amdgcn-amd-amdhsa--gfx950"')
e('.text')
e('.globl standalone__gqa_softmax__near_ridge_kernel')
e('.p2align 8')
e('.type standalone__gqa_softmax__near_ridge_kernel,@function')
e('standalone__gqa_softmax__near_ridge_kernel:')

QF = 128
RING = 160; NRING = 8
PK = RING
vKA = 192
vVA = 200
vQOFF = 204
vKDS = 205
vVDS = 209
vM = 210; vT = 211; vMC = 212
vL0 = 213; vL1 = 214; vL2 = 215; vL3 = 216
vR = 217
QF2 = 218
vOB = 250; vQB = 251; vQ7s = 252; vQ7h = 253; vLin = 254
vQS = 204
NV = 255

e('    s_cmp_ge_u32 s2, 256')
e('    s_cbranch_scc1 L_done')
e('    s_load_dwordx4 s[4:7], s[0:1], 0')
e('    s_load_dwordx4 s[8:11], s[0:1], 16')
e('    v_lshrrev_b32 v1, 6, v0')
e('    v_and_b32 v2, 63, v0')
e('    v_readfirstlane_b32 s28, v1')
e('    s_waitcnt lgkmcnt(0)')
for (srd, ptr, nb) in ((12, 4, Q_BYTES), (16, 6, KV_BYTES), (20, 8, KV_BYTES), (24, 10, Q_BYTES)):
    e(f'    s_mov_b32 s{srd}, s{ptr}')
    e(f'    s_and_b32 s{srd+1}, s{ptr+1}, 0xffff')
    e(f'    s_mov_b32 s{srd+2}, {nb}')
    e(f'    s_mov_b32 s{srd+3}, 0x00020000')
e(f'    s_mov_b32 s32, {f32bits(SCALE_LOG2E):#x}')
e('    v_and_b32 v3, 31, v2')
e('    v_lshrrev_b32 v4, 5, v2')
e('    v_and_b32 v5, 15, v2')
e('    v_lshrrev_b32 v6, 4, v2')
e('    v_and_b32 v9, 15, v3')
e('    v_lshlrev_b32 v7, 8, v3')
for s in range(8):
    e(f'    v_xor_b32 v8, {2*s}, v4')
    e(f'    v_xor_b32 v8, v8, v9')
    e(f'    v_lshl_add_u32 v{vKA+s}, v8, 4, v7')
e('    v_lshrrev_b32 v10, 2, v5')
e('    v_lshl_add_u32 v11, v4, 2, v10')
e('    v_lshlrev_b32 v11, 8, v11')
e(f'    v_add_u32 v11, {VBASE}, v11')
e('    v_and_b32 v12, 1, v6')
e('    v_and_b32 v13, 3, v2')
e('    v_lshrrev_b32 v13, 1, v13')
e('    v_lshl_add_u32 v13, v12, 1, v13')
e('    v_lshlrev_b32 v14, 2, v10')
e('    v_and_b32 v15, 1, v2')
e('    v_lshlrev_b32 v15, 3, v15')
for dt in range(4):
    e(f'    v_xor_b32 v16, {4*dt}, v13')
    e(f'    v_xor_b32 v16, v16, v14')
    e(f'    v_lshl_add_u32 v16, v16, 4, v15')
    e(f'    v_add_u32 v{vVA+dt}, v11, v16')
e('    v_lshrrev_b32 v16, 3, v2')
e('    v_and_b32 v17, 7, v2')
e('    v_xor_b32 v17, v17, v16')
e('    v_lshlrev_b32 v16, 8, v16')
e(f'    v_lshl_add_u32 v{vQS}, v17, 4, v16')
e('    s_lshl_b32 s39, s28, 12')
e(f'    s_add_u32 s39, s39, {STAGE}')
e('    v_lshlrev_b32 v16, 7, v3')
e(f'    v_add_u32 v{vQB}, s39, v16')
e(f'    v_lshl_add_u32 v{vOB}, v4, 3, v{vQB}')
e('    v_and_b32 v16, 7, v3')
e(f'    v_lshlrev_b32 v{vQ7s}, 4, v16')
e('    v_lshlrev_b32 v16, 4, v4')
e(f'    v_xor_b32 v{vQ7h}, v16, v{vQ7s}')
e('    v_lshlrev_b32 v16, 4, v2')
e(f'    v_add_u32 v{vLin}, s39, v16')
e('    v_lshlrev_b32 v16, 8, v6')
for jj in range(4):
    e(f'    v_add_u32 v17, {4*jj}, v6')
    e('    v_and_b32 v17, 15, v17')
    e('    v_xor_b32 v17, v17, v5')
    e(f'    v_lshl_add_u32 v{vKDS+jj}, v17, 4, v16')
e('    v_and_b32 v17, 3, v6')
e('    v_lshlrev_b32 v17, 2, v17')
e('    v_xor_b32 v17, v17, v5')
e(f'    v_lshl_add_u32 v{vVDS}, v17, 4, v16')
e('    s_lshl_b32 s35, s28, 13')
e('    s_lshl_b32 s34, s2, 16')
e('    s_add_u32 s34, s34, s35')
e('    s_add_u32 s36, s34, 4096')
e('    s_lshl_b32 s30, s2, 18')
e('    s_add_u32 s30, s30, s35')
e('    s_mov_b32 s29, 0')


vm = VM()

def kv_dma(which, tag):
    srd = 's[16:19]' if which == 'K' else 's[20:23]'
    lbase = 0 if which == 'K' else VBASE
    e(f'    s_add_u32 s37, s35, {lbase}')
    e('    s_mov_b32 m0, s37')
    e('    s_nop 0')
    for j in range(4):
        va = f'v{vKDS+j}' if which == 'K' else f'v{vVDS}'
        e(f'    buffer_load_dwordx4 {va}, {srd}, s34 offen offset:{j*1024} lds')
    e(f'    s_add_u32 s37, s35, {lbase+4096}')
    e('    s_mov_b32 m0, s37')
    e('    s_nop 0')
    for j in range(4):
        va = f'v{vKDS+j}' if which == 'K' else f'v{vVDS}'
        e(f'    buffer_load_dwordx4 {va}, {srd}, s36 offen offset:{j*1024} lds')
    vm.issue(tag, 8)

def q_dma(hb):
    for i in range(4):
        e(f'    s_add_u32 s37, s39, {i*1024}')
        e('    s_mov_b32 m0, s37')
        e(f'    s_add_u32 s38, s30, {i*2048 + hb*128}')
        e(f'    buffer_load_dwordx4 v{vQS}, s[12:15], s38 offen lds')

def q_read(base, hb):
    for sp in range(4):
        e(f'    v_xor_b32 v{vT}, {sp<<5}, v{vQ7h}')
        e(f'    v_add_u32 v{vT}, v{vT}, v{vQB}')
        r = base + 4 * (4 * hb + sp)
        e(f'    ds_read_b128 v[{r}:{r+3}], v{vT}')
    e('    s_waitcnt lgkmcnt(0)')

def q_loads(base=QF):
    for s in range(8):
        e(f'    buffer_load_dwordx4 v[{base+4*s}:{base+4*s+3}], v{vQOFF}, s[12:15], s30 offen offset:{s*32}')
    vm.issue('Q', 8)

kv_dma('K', 'K')
q_dma(0)
kv_dma('V', 'V')
e('    s_waitcnt vmcnt(8)')
q_read(QF, 0)
q_dma(1)
e('    s_waitcnt vmcnt(0)')
q_read(QF, 1)
e('    s_add_u32 s30, s30, 65536')
e('    s_barrier')
e('    s_branch L_it0body')
e('L_loop:')
e('    s_waitcnt vmcnt(%d)' % 99)
W0_IDX = len(out) - 1
e('L_it0body:')

DEPTH = 4
kseq = [(t, s) for t in range(8) for s in range(8)]
vseq = [(t, u, dt) for t in range(8) for u in range(2) for dt in range(4)]

def gen_iteration(it):
    last = (it == 3)
    QS = QF if it % 2 == 0 else QF2
    QN = QF2 if it % 2 == 0 else QF
    e('    s_sub_u32 s31, s30, 65536')
    def kread(n):
        t, s = kseq[n]
        r = RING + 4 * (n % NRING)
        e(f'    ds_read_b128 v[{r}:{r+3}], v{vKA+s} offset:{t*8192}')
    for n in range(DEPTH):
        kread(n)
    for n, (t, s) in enumerate(kseq):
        if n + DEPTH < len(kseq):
            kread(n + DEPTH)
            e(f'    s_waitcnt lgkmcnt({DEPTH})')
        else:
            e(f'    s_waitcnt lgkmcnt({len(kseq)-1-n})')
        r = RING + 4 * (n % NRING)
        c = '0' if s == 0 else f'v[{16*t}:{16*t+15}]'
        e(f'    v_mfma_f32_32x32x16_bf16 v[{16*t}:{16*t+15}], v[{r}:{r+3}], v[{QS+4*s}:{QS+4*s+3}], {c}')
    if not last:
        q_dma(0)
    if last:
        e('    s_cmp_lt_u32 s29, 1')
        e('    s_cbranch_scc0 L_skipq')
        e('    s_add_u32 s30, s30, %d' % (1020 * 65536))
        q_dma(0)
        e('L_skipq:')
        e('    s_barrier')
        e('    s_add_u32 s34, s34, %d' % (256 * 65536))
        e('    s_add_u32 s36, s36, %d' % (256 * 65536))
        e('    s_cmp_lt_u32 s29, 1')
        e('    s_cbranch_scc0 L_skipk')
        kv_dma('K', 'Kn')
        e('L_skipk:')
    e(f'    v_max3_f32 v{vM}, v0, v1, v2')
    for j in range(3, 127, 2):
        e(f'    v_max3_f32 v{vM}, v{vM}, v{j}, v{j+1}')
    e(f'    v_max_f32 v{vM}, v{vM}, v127')
    e(f'    v_mov_b32 v{vT}, v{vM}')
    e('    s_nop 1')
    e(f'    v_permlane32_swap_b32 v{vM}, v{vT}')
    e(f'    v_max_f32 v{vM}, v{vM}, v{vT}')
    e(f'    v_mul_f32 v{vMC}, s32, v{vM}')
    e(f'    v_mov_b32 v{vL0}, 0')
    e(f'    v_mov_b32 v{vL1}, 0')
    e(f'    v_mov_b32 v{vL2}, 0')
    e(f'    v_mov_b32 v{vL3}, 0')
    for g in range(32):
        b = 4 * g
        for j in range(4):
            e(f'    v_fma_f32 v{b+j}, v{b+j}, s32, -v{vMC}')
        for j in range(4):
            e(f'    v_exp_f32 v{b+j}, v{b+j}')
        for j in range(4):
            e(f'    v_add_f32 v{vL0+j}, v{vL0+j}, v{b+j}')
        e(f'    v_cvt_pk_bf16_f32 v{b//2}, v{b}, v{b+1}')
        e(f'    v_cvt_pk_bf16_f32 v{b//2+1}, v{b+2}, v{b+3}')
    e(f'    v_add_f32 v{vL0}, v{vL0}, v{vL1}')
    e(f'    v_add_f32 v{vL2}, v{vL2}, v{vL3}')
    e(f'    v_add_f32 v{vL0}, v{vL0}, v{vL2}')
    e(f'    v_mov_b32 v{vT}, v{vL0}')
    e('    s_nop 1')
    e(f'    v_permlane32_swap_b32 v{vL0}, v{vT}')
    e(f'    v_add_f32 v{vL0}, v{vL0}, v{vT}')
    e(f'    v_rcp_f32 v{vR}, v{vL0}')
    e('    s_waitcnt vmcnt(%d)' % (8 if last else 0))
    if last:
        e('    s_cmp_lt_u32 s29, 1')
        e('    s_cbranch_scc0 L_skipq1')
    q_read(QN, 0)
    q_dma(1)
    if last:
        e('L_skipq1:')
    if it == 0:
        e('    s_barrier')
    def vread(n):
        t, u, dt = vseq[n]
        r = RING + 4 * (n % NRING)
        for jj in range(2):
            off = (32 * t + 16 * u + 8 * jj) * 256
            e(f'    ds_read_b64_tr_b16 v[{r+2*jj}:{r+2*jj+1}], v{vVA+dt} offset:{off}')
    for n in range(DEPTH):
        vread(n)
    for n, (t, u, dt) in enumerate(vseq):
        if n + DEPTH < len(vseq):
            vread(n + DEPTH)
            e(f'    s_waitcnt lgkmcnt({2*DEPTH})')
        else:
            e(f'    s_waitcnt lgkmcnt({2*(len(vseq)-1-n)})')
        r = RING + 4 * (n % NRING)
        first = (t == 0 and u == 0)
        c = '0' if first else f'v[{64+16*dt}:{64+16*dt+15}]'
        p = 8 * t + 4 * u
        e(f'    v_mfma_f32_32x32x16_bf16 v[{64+16*dt}:{64+16*dt+15}], v[{r}:{r+3}], v[{p}:{p+3}], {c}')
    e('    s_waitcnt vmcnt(0)')
    if last:
        e('    s_cmp_lt_u32 s29, 1')
        e('    s_cbranch_scc0 L_skipq2')
    q_read(QN, 1)
    e('    s_add_u32 s30, s30, 65536')
    if last:
        e('L_skipq2:')
    e('    s_nop 15')
    for hb in range(2):
        for dd in range(2):
            dt = 2 * hb + dd
            for k in range(4):
                b = 64 + 16 * dt + 4 * k
                pk = PK + 2 * k
                for j in range(4):
                    e(f'    v_mul_f32 v{b+j}, v{b+j}, v{vR}')
                e(f'    v_cvt_pk_bf16_f32 v{pk}, v{b}, v{b+1}')
                e(f'    v_cvt_pk_bf16_f32 v{pk+1}, v{b+2}, v{b+3}')
                e(f'    v_xor_b32 v{vT}, {(4*dd+k)<<4}, v{vQ7s}')
                e(f'    v_add_u32 v{vT}, v{vT}, v{vOB}')
                e(f'    ds_write_b64 v{vT}, v[{pk}:{pk+1}]')
        e('    s_waitcnt lgkmcnt(0)')
        for i in range(4):
            e(f'    ds_read_b128 v[{PK+8+4*i}:{PK+11+4*i}], v{vLin} offset:{i*1024}')
        e('    s_waitcnt lgkmcnt(0)')
        for i in range(4):
            e(f'    s_add_u32 s38, s31, {i*2048 + hb*128}')
            e(f'    buffer_store_dwordx4 v[{PK+8+4*i}:{PK+11+4*i}], v{vQS}, s[24:27], s38 offen')
        e('    s_nop 1')
    if last:
        e('    s_barrier')
        e('    s_cmp_lt_u32 s29, 1')
        e('    s_cbranch_scc0 L_skipv')
        kv_dma('V', 'Vn')
        e('L_skipv:')
    return

for it in range(4):
    gen_iteration(it)
e('    s_add_u32 s29, s29, 1')
e('    s_cmp_lt_u32 s29, 2')
e('    s_cbranch_scc1 L_loop')
out[W0_IDX] = '    s_nop 0'
e('L_done:')
e('    s_endpgm')
e('.section .rodata,"a"')
e('.p2align 6')
e('.amdhsa_kernel standalone__gqa_softmax__near_ridge_kernel')
e('  .amdhsa_next_free_vgpr 256')
e('  .amdhsa_next_free_sgpr 48')
e('  .amdhsa_accum_offset 256')
e('  .amdhsa_group_segment_fixed_size 0')
e('  .amdhsa_kernarg_size 48')
e('  .amdhsa_user_sgpr_count 2')
e('  .amdhsa_user_sgpr_kernarg_segment_ptr 1')
e('  .amdhsa_system_sgpr_workgroup_id_x 1')
e('.end_amdhsa_kernel')

path = sys.argv[1] if len(sys.argv) > 1 else 'standalone__gqa_softmax__near_ridge.s'
open(path, 'w').write('\n'.join(out) + '\n')
print('wrote', path, len(out), 'lines')
```
